```python
import torch

def _softmax(x, axis=-1):
    return torch.softmax(x, dim=axis)
def _gelu(x):
    return torch.nn.functional.gelu(x, approximate="tanh")
def _silu(x):
    return torch.nn.functional.silu(x)
def _sigmoid(x):
    return torch.sigmoid(x)
def _layernorm(x, axis=-1, eps=1e-5):
    m = x.mean(dim=axis, keepdim=True)
    v = x.var(dim=axis, keepdim=True, unbiased=False)
    return (x - m) / torch.sqrt(v + eps)
def _scatter_add(tgt, idx, src, axis=0):
    return tgt.clone().index_add_(axis, idx, src)
def _segment_sum(src, seg, n):
    out = torch.zeros((n,) + src.shape[1:], dtype=src.dtype)
    return out.index_add_(0, seg, src)
def _pad(x, pw):
    flat = tuple(v for pair in reversed(pw) for v in pair)
    return torch.nn.functional.pad(x, flat)

kernel_name = 'concat_heads__gqa_block_cached__gqa_block_cached__decode'

def setup_inputs():

    _w = (lambda a: (lambda t: t.to(torch.bfloat16) if t.is_floating_point() else t)(torch.as_tensor(a)))
    def _A_setup():
        B, Sq, D = 1, 1, 576
        Hq, Hkv, Sk, Dh = 32, 16, 16384, 128
        assert Hq % Hkv == 0, (Hq, Hkv)
        return {
            "x": _w((lambda *s: torch.randn(*s, dtype=torch.bfloat16) * 0.8)(B, Sq, D)),
            "k_cache": _w((lambda *s: torch.randn(*s, dtype=torch.bfloat16) * 0.8)(B, Hkv, Sk, Dh)),
            "v_cache": _w((lambda *s: torch.randn(*s, dtype=torch.bfloat16) * 0.05)(B, Hkv, Sk, Dh)),
            "wq": _w((lambda *s: torch.randn(*s, dtype=torch.bfloat16) * 0.8)(D, Hq * Dh) * (D ** -0.5)),
            "wo": _w((lambda *s: torch.randn(*s, dtype=torch.bfloat16) * 0.05)(Hq * Dh, D) * ((Hq * Dh) ** -0.5)),
        }
    _A_in = _A_setup()

    def _B_setup():
        B, Sq, D = 1, 1, 576
        Hq, Hkv, Sk, Dh = 32, 16, 16384, 128
        assert Hq % Hkv == 0, (Hq, Hkv)
        return {
            "x": _w((lambda *s: torch.randn(*s, dtype=torch.bfloat16) * 0.8)(B, Sq, D)),
            "k_cache": _w((lambda *s: torch.randn(*s, dtype=torch.bfloat16) * 0.8)(B, Hkv, Sk, Dh)),
            "v_cache": _w((lambda *s: torch.randn(*s, dtype=torch.bfloat16) * 0.05)(B, Hkv, Sk, Dh)),
            "wq": _w((lambda *s: torch.randn(*s, dtype=torch.bfloat16) * 0.8)(D, Hq * Dh) * (D ** -0.5)),
            "wo": _w((lambda *s: torch.randn(*s, dtype=torch.bfloat16) * 0.05)(Hq * Dh, D) * ((Hq * Dh) ** -0.5)),
        }
    _B_in = _B_setup()

    return {
        "A_x": _A_in["x"],
        "A_k_cache": _A_in["k_cache"],
        "A_v_cache": _A_in["v_cache"],
        "A_wq": _A_in["wq"],
        "A_wo": _A_in["wo"],
        "B_x": _B_in["x"],
        "B_k_cache": _B_in["k_cache"],
        "B_v_cache": _B_in["v_cache"],
        "B_wq": _B_in["wq"],
        "B_wo": _B_in["wo"],
    }

def reference(A_x, A_k_cache, A_v_cache, A_wq, A_wo, B_x, B_k_cache, B_v_cache, B_wq, B_wo):
    def _A_ref(x, k_cache, v_cache, wq, wo):
        B, Sq, D = x.shape
        Hq, Dh = 32, 128
        Hkv = k_cache.shape[1]
        rep = Hq // Hkv
        q = (lambda x, *d: x.permute(*d))((x @ wq).reshape(B, Sq, Hq, Dh), 0, 2, 1, 3)
        k = (lambda x, n, axis: torch.repeat_interleave(x, n, dim=axis))(k_cache, rep, axis=1)
        v = (lambda x, n, axis: torch.repeat_interleave(x, n, dim=axis))(v_cache, rep, axis=1)
        scores = torch.einsum("bhqd,bhkd->bhqk", q, k) * (Dh ** -0.5)
        p = _softmax(scores, axis=-1)
        o = torch.einsum("bhqk,bhkd->bhqd", p, v)
        return (lambda x, *d: x.permute(*d))(o, 0, 2, 1, 3).reshape(B, Sq, Hq * Dh) @ wo

    def _B_ref(x, k_cache, v_cache, wq, wo):
        B, Sq, D = x.shape
        Hq, Dh = 32, 128
        Hkv = k_cache.shape[1]
        rep = Hq // Hkv
        q = (lambda x, *d: x.permute(*d))((x @ wq).reshape(B, Sq, Hq, Dh), 0, 2, 1, 3)
        k = (lambda x, n, axis: torch.repeat_interleave(x, n, dim=axis))(k_cache, rep, axis=1)
        v = (lambda x, n, axis: torch.repeat_interleave(x, n, dim=axis))(v_cache, rep, axis=1)
        scores = torch.einsum("bhqd,bhkd->bhqk", q, k) * (Dh ** -0.5)
        p = _softmax(scores, axis=-1)
        o = torch.einsum("bhqk,bhkd->bhqd", p, v)
        return (lambda x, *d: x.permute(*d))(o, 0, 2, 1, 3).reshape(B, Sq, Hq * Dh) @ wo

    a = _A_ref(A_x, A_k_cache, A_v_cache, A_wq, A_wo)
    b = _B_ref(B_x, B_k_cache, B_v_cache, B_wq, B_wo)
    return torch.concatenate([a, b], axis=-1)
```

```python
import sys

NAME = "concat_heads__gqa_block_cached__gqa_block_cached__decode"

P = dict(
    NT=1,
    WS=2048,
    TS=32768,
    KFIRST=2,
    DIAG=0,
    SPIN=200000,
)
for a in sys.argv[2:]:
    k, v = a.split("=")
    P[k] = int(v)

out = []
def e(s=""):
    out.append("    " + s if s and not s.endswith(":") else s)
def c(s):
    out.append("    ; " + s)

NTS = " nt" if P["NT"] else ""

sW = 3
sPR = 4; sKVH = 5; sSPLIT = 6; sPIDX = 7; sGRP = 8
sREF = 9
sIT = 10
sROLE = 11
sT0 = 12; sT1 = 13; sT2 = 14; sT3 = 15
sX = 42
SRD_K = 44; SRD_V = 48; SRD_WQ = 52; SRD_WO = 56; SRD_WS = 60; SRD_DBG = 64; SRD_OUT = 68
sXD = 72
sSELLO = 90; sSELHI = 91
sC3456 = 92; sC6912 = 93
sSCALE = 94; sLOG2E = 95
sSPIN = 96
sMASKHI = 97
sTS0 = 98
sEX = 100

def srd(n): return f"s[{n}:{n+3}]"

vTID = 0; vL = 1; vK = 2; vV = 3; vSC = 4; vA5 = 5; vA6 = 6; vA7 = 7
S = 8
A = 40
T = 56
B = 64
def v(n): return f"v{n}"
def vr(n, k): return f"v[{n}:{n+k-1}]"

L_QP = 0
OP_STRIDE = 1040
L_OP = 0
L_QB = 16896
L_ST = 17408
L_CNT = 17664
L_FT = 17680
L_SC = 17920
L_FR = L_OP
L_YP = L_SC
LDS_TOTAL = L_YP + 16 * 2304

WS_STATS = 0
WS_Y = 65536
WS_YPR = 18 * 16384
WS_SIZE = WS_Y + 2 * WS_YPR
WS_DIAG = 1 << 20

hdr = open("cdna_kernels/%s.s.ref" % NAME).read().split("\n")
for line in hdr:
    if line.startswith("; @launch"):
        break
    out.append(line)
out.append(f"; @launch grid=(256,1,1) block=(1024,1,1) lds={LDS_TOTAL}")
out.append('.amdgcn_target "amdgcn-amd-amdhsa--gfx950"')
out.append(".text")
out.append(f".globl {NAME}_kernel")
out.append(".p2align 8")
out.append(f".type {NAME}_kernel,@function")
out.append(f"{NAME}_kernel:")

def stamp(idx):
    if not P["DIAG"]:
        return
    lbl = f"L_st{idx}"
    e(f"s_cmp_lg_u32 s{sW}, 0")
    e(f"s_cbranch_scc1 {lbl}")
    e(f"s_memrealtime s[{sTS0}:{sTS0+1}]")
    e("s_waitcnt lgkmcnt(0)")
    e(f"v_mov_b32 v{vA6}, s{sTS0}")
    e(f"s_lshl_b32 s{sT3}, s2, 6")
    e(f"s_add_u32 s{sT3}, s{sT3}, {WS_DIAG + idx*4}")
    e(f"v_mov_b32 v{vA7}, s{sT3}")
    e(f"buffer_store_dword v{vA6}, v{vA7}, {srd(SRD_WS)}, 0 offen")
    out.append(f"{lbl}:")

e("s_cmp_ge_u32 s2, 256")
e("s_cbranch_scc1 L_end")
e("s_load_dwordx16 s[16:31], s[0:1], 0")
e("s_load_dwordx8 s[32:39], s[0:1], 64")
e("s_load_dwordx2 s[40:41], s[0:1], 96")
e(f"v_and_b32 v{vL}, 63, v0")
e(f"v_lshrrev_b32 v{vA5}, 6, v0")
e(f"s_and_b32 s{sKVH}, s2, 15")
e(f"v_readfirstlane_b32 s{sW}, v{vA5}")
e(f"s_lshr_b32 s{sPR}, s2, 4")
e(f"s_and_b32 s{sPR}, s{sPR}, 1")
e(f"s_lshr_b32 s{sSPLIT}, s2, 5")
e(f"s_and_b32 s{sGRP}, s2, 31")
e(f"s_lshl_b32 s{sPIDX}, s{sSPLIT}, 4")
e(f"s_add_u32 s{sPIDX}, s{sPIDX}, s{sKVH}")
e(f"s_mov_b32 s{sSELLO}, 0x05040100")
e(f"s_mov_b32 s{sSELHI}, 0x07060302")
e(f"s_mov_b32 s{sC3456}, 3456")
e(f"s_mov_b32 s{sC6912}, 6912")
e(f"s_mov_b32 s{sSCALE}, 0x3db504f3")
e(f"s_mov_b32 s{sLOG2E}, 0x3fb8aa3b")
e(f"s_mov_b32 s{sMASKHI}, 0xffff0000")
c("vK = (l>>3)*256 + (l&7)*16 + w*WS ; vV = (l>>4)*512 + (l&15)*16 + w*WS")
e(f"s_mul_i32 s{sT0}, s{sW}, {P['WS']}")
e(f"v_lshrrev_b32 v{vA5}, 3, v{vL}")
e(f"v_lshlrev_b32 v{vA5}, 8, v{vA5}")
e(f"v_and_b32 v{vA6}, 7, v{vL}")
e(f"v_lshl_add_u32 v{vK}, v{vA6}, 4, v{vA5}")
e(f"v_add_u32 v{vK}, s{sT0}, v{vK}")
e(f"v_lshrrev_b32 v{vA5}, 4, v{vL}")
e(f"v_lshlrev_b32 v{vA5}, 9, v{vA5}")
e(f"v_and_b32 v{vA6}, 15, v{vL}")
e(f"v_lshl_add_u32 v{vV}, v{vA6}, 4, v{vA5}")
e(f"v_add_u32 v{vV}, s{sT0}, v{vV}")
c("chunk byte offset = kvh*4MiB + split*512KiB")
e(f"s_lshl_b32 s{sT0}, s{sKVH}, 22")
e(f"s_lshl_b32 s{sT1}, s{sSPLIT}, 19")
e(f"s_add_u32 s{sT0}, s{sT0}, s{sT1}")
e("s_waitcnt lgkmcnt(0)")
e(f"s_cmp_eq_u32 s{sPR}, 1")
e(f"s_cselect_b32 s{sX}, s26, s16")
e(f"s_cselect_b32 s{sX+1}, s27, s17")
e(f"s_cselect_b32 s{SRD_K}, s28, s18")
e(f"s_cselect_b32 s{SRD_K+1}, s29, s19")
e(f"s_cselect_b32 s{SRD_V}, s30, s20")
e(f"s_cselect_b32 s{SRD_V+1}, s31, s21")
e(f"s_cselect_b32 s{SRD_WQ}, s32, s22")
e(f"s_cselect_b32 s{SRD_WQ+1}, s33, s23")
e(f"s_cselect_b32 s{SRD_WO}, s34, s24")
e(f"s_cselect_b32 s{SRD_WO+1}, s35, s25")
e(f"s_add_u32 s{SRD_K}, s{SRD_K}, s{sT0}")
e(f"s_addc_u32 s{SRD_K+1}, s{SRD_K+1}, 0")
e(f"s_add_u32 s{SRD_V}, s{SRD_V}, s{sT0}")
e(f"s_addc_u32 s{SRD_V+1}, s{SRD_V+1}, 0")
for n, sz in ((SRD_K, 524288), (SRD_V, 524288), (SRD_WQ, 4718592), (SRD_WO, 4718592)):
    e(f"s_and_b32 s{n+1}, s{n+1}, 0xffff")
    e(f"s_mov_b32 s{n+2}, {sz}")
    e(f"s_mov_b32 s{n+3}, 0x00020000")
wssz = WS_SIZE if not P["DIAG"] else WS_DIAG + 256 * 64
for n, src, sz in ((SRD_WS, 40, wssz), (SRD_DBG, 38, 256), (SRD_OUT, 36, 2304)):
    e(f"s_mov_b32 s{n}, s{src}")
    e(f"s_and_b32 s{n+1}, s{src+1}, 0xffff")
    e(f"s_mov_b32 s{n+2}, {sz}")
    e(f"s_mov_b32 s{n+3}, 0x00020000")
c("x dwords for this wave: 18 dwords at x + 72*w")
e(f"s_mul_i32 s{sT1}, s{sW}, 72")
e(f"s_load_dwordx16 s[{sXD}:{sXD+15}], s[{sX}:{sX+1}], s{sT1}")
e(f"s_add_u32 s{sT1}, s{sT1}, 64")
e(f"s_load_dwordx2 s[{sXD+16}:{sXD+17}], s[{sX}:{sX+1}], s{sT1}")
stamp(0)

def kload(slot_pair, srdn, voff, soff, odd_off):
    r = S + 8 * slot_pair
    e(f"buffer_load_dwordx4 {vr(r,4)}, v{voff}, {srd(srdn)}, {soff} offen{NTS}")
    e(f"buffer_load_dwordx4 {vr(r+4,4)}, v{voff}, {srd(srdn)}, {soff} offen offset:{odd_off}{NTS}")

e(f"s_mov_b32 s{sREF}, 0")
for j in range(P["KFIRST"]):
    kload(j, SRD_K, vK, f"s{sREF}", 128)
    e(f"s_add_u32 s{sREF}, s{sREF}, {P['TS']}")

c("wq voffset = kvh*512 + l*8 + w*36*8192")
e(f"s_mul_i32 s{sT0}, s{sW}, {36*8192}")
e(f"s_lshl_b32 s{sT1}, s{sKVH}, 9")
e(f"s_add_u32 s{sT0}, s{sT0}, s{sT1}")
e(f"v_lshlrev_b32 v{vA5}, 3, v{vL}")
e(f"v_add_u32 v{vA5}, s{sT0}, v{vA5}")
def wq_reg(r):
    return B + 2 * r if r < 32 else A + 2 * (r - 32)
e(f"s_mov_b32 s{sT2}, 0")
for r in range(36):
    e(f"buffer_load_dwordx2 {vr(wq_reg(r),2)}, v{vA5}, {srd(SRD_WQ)}, s{sT2} offen")
    if r != 35:
        e(f"s_add_u32 s{sT2}, s{sT2}, 8192")
for j in range(P["KFIRST"], 4):
    kload(j, SRD_K, vK, f"s{sREF}", 128)
    e(f"s_add_u32 s{sREF}, s{sREF}, {P['TS']}")
KLATE = 2 * (4 - P["KFIRST"])

c("sentinel init of this consumer's y block")
e(f"s_cmp_ge_u32 s{sPIDX}, 18")
e("s_cbranch_scc1 L_nosent")
e(f"s_mul_i32 s{sT0}, s{sPR}, {WS_YPR}")
e(f"s_lshl_b32 s{sT1}, s{sPIDX}, 14")
e(f"s_add_u32 s{sT0}, s{sT0}, s{sT1}")
e(f"s_add_u32 s{sT0}, s{sT0}, {WS_Y}")
e(f"v_lshlrev_b32 v{vA6}, 4, v0")
e(f"v_add_u32 v{vA6}, s{sT0}, v{vA6}")
for i in range(4):
    e(f"v_mov_b32 v{T+i}, -1")
e(f"buffer_store_dwordx4 {vr(T,4)}, v{vA6}, {srd(SRD_WS)}, 0 offen sc1")
e("s_nop 1")
out.append("L_nosent:")

e(f"v_mov_b32 v{vA6}, {L_CNT}")
e(f"v_mov_b32 v{vA7}, 0")
e(f"ds_write_b32 v{vA6}, v{vA7}")

QA = A + 8
for i in range(4):
    e(f"v_mov_b32 v{QA+i}, 0")
e("s_waitcnt lgkmcnt(0)")
for i in range(18):
    if i % 3 == 0:
        left = 36 - 2 * (i + 3)
        e(f"s_waitcnt vmcnt({left + KLATE})")
    a = wq_reg(2 * i); b = wq_reg(2 * i + 1)
    t = T + 4 * (i & 1)
    e(f"v_perm_b32 v{t}, v{b}, v{a}, s{sSELLO}")
    e(f"v_perm_b32 v{t+1}, v{b}, v{a}, s{sSELHI}")
    e(f"v_perm_b32 v{t+2}, v{b+1}, v{a+1}, s{sSELLO}")
    e(f"v_perm_b32 v{t+3}, v{b+1}, v{a+1}, s{sSELHI}")
    for k in range(4):
        e(f"v_dot2c_f32_bf16 v{QA+k}, s{sXD+i}, v{t+k}")
c("wo: vA6 = (kvh*256+16w+8hf)*1152 + c32*16 ; vA7 = same row base + 1024 + c32*4")
e(f"s_lshl_b32 s{sT0}, s{sKVH}, 8")
e(f"s_lshl_b32 s{sT1}, s{sW}, 4")
e(f"s_add_u32 s{sT0}, s{sT0}, s{sT1}")
e(f"s_mul_i32 s{sT0}, s{sT0}, 1152")
e(f"v_lshrrev_b32 v{vA5}, 5, v{vL}")
e(f"v_mul_u32_u24 v{vA5}, {8*1152}, v{vA5}")
e(f"v_add_u32 v{vA5}, s{sT0}, v{vA5}")
e(f"v_and_b32 v{vA7}, 31, v{vL}")
e(f"v_lshl_add_u32 v{B+62}, v{vA7}, 4, v{vA5}")
e(f"v_lshl_add_u32 v{vA7}, v{vA7}, 2, v{vA5}")
vWO = B + 62
def wo_off(r, extra):
    if r < 3: return "0", r * 1152 + extra
    if r < 6: return f"s{sC3456}", (r - 3) * 1152 + extra
    return f"s{sC6912}", (r - 6) * 1152 + extra
def wo4_reg(r, blk):
    return B + (r * 2 + blk) * 4
def wo1_reg(r):
    return B + 32 + r
e(f"v_lshlrev_b32 v{vA5}, 4, v0")
e(f"ds_write_b128 v{vA5}, {vr(QA,4)} offset:{L_QP}")
for r in range(4):
    for blk in range(2):
        so, io = wo_off(r, blk * 512)
        e(f"buffer_load_dwordx4 {vr(wo4_reg(r,blk),4)}, v{vWO}, {srd(SRD_WO)}, {so} offen offset:{io}")
for r in range(8):
    so, io = wo_off(r, 1024)
    e(f"buffer_load_dword v{wo1_reg(r)}, v{vA7}, {srd(SRD_WO)}, {so} offen offset:{io}")
e("s_waitcnt lgkmcnt(0)")
e("s_barrier")
e(f"s_cmp_ge_u32 s{sW}, 4")
e("s_cbranch_scc1 L_q2done")
e(f"v_lshlrev_b32 v{vA5}, 2, v0")
for w in range(16):
    e(f"ds_read_b32 v{A+w}, v{vA5} offset:{L_QP + w*1024}")
e(f"v_lshlrev_b32 v{vA6}, 1, v0")
e("s_waitcnt lgkmcnt(0)")
for st in (8, 4, 2, 1):
    for i in range(st):
        e(f"v_add_f32 v{A+i}, v{A+i}, v{A+i+st}")
e(f"v_cvt_pk_bf16_f32 v{A}, v{A}, v{A}")
e(f"ds_write_b16 v{vA6}, v{A} offset:{L_QB}")
e("s_waitcnt lgkmcnt(0)")
out.append("L_q2done:")
e("s_barrier")
e(f"v_and_b32 v{vA5}, 7, v{vL}")
e(f"v_lshlrev_b32 v{vA5}, 4, v{vA5}")
for h in range(2):
    for half in range(2):
        e(f"ds_read_b128 {vr(A + h*8 + half*4, 4)}, v{vA5} offset:{L_QB + h*256 + half*128}")
c("score write address: SC + w*1024 + (l>>2)*4")
e(f"s_lshl_b32 s{sT0}, s{sW}, 10")
e(f"s_add_u32 s{sT0}, s{sT0}, {L_SC}")
e(f"v_lshrrev_b32 v{vSC}, 2, v{vL}")
e(f"v_lshl_add_u32 v{vSC}, v{vSC}, 2, s{sT0}")
e("s_waitcnt lgkmcnt(0)")
stamp(1)

def k_iter(ref_srd, ref_voff, ref_odd):
    for j in range(4):
        E = S + 8 * j; O = E + 4
        h0 = T + 2 * (j & 1); h1 = h0 + 1; r = T + 4 + (j & 1)
        e("s_waitcnt vmcnt(6)")
        e(f"v_mov_b32 v{h0}, 0")
        e(f"v_mov_b32 v{h1}, 0")
        for i in range(4):
            e(f"v_dot2c_f32_bf16 v{h0}, v{E+i}, v{A+i}")
            e(f"v_dot2c_f32_bf16 v{h1}, v{E+i}, v{A+8+i}")
        for i in range(4):
            e(f"v_dot2c_f32_bf16 v{h0}, v{O+i}, v{A+4+i}")
            e(f"v_dot2c_f32_bf16 v{h1}, v{O+i}, v{A+12+i}")
        kload(j, ref_srd, ref_voff, f"s{sREF}", ref_odd)
        e(f"s_add_u32 s{sREF}, s{sREF}, {P['TS']}")
        e("s_nop 0")
        e(f"v_add_f32_dpp v{r}, v{h0}, v{h0} row_shl:4 row_mask:0xf bank_mask:0x5")
        e(f"v_add_f32_dpp v{r}, v{h1}, v{h1} row_shr:4 row_mask:0xf bank_mask:0xa")
        e("s_nop 1")
        e(f"v_add_f32_dpp v{r}, v{r}, v{r} quad_perm:[1,0,3,2] row_mask:0xf bank_mask:0xf")
        e("s_nop 1")
        e(f"v_add_f32_dpp v{r}, v{r}, v{r} quad_perm:[2,3,0,1] row_mask:0xf bank_mask:0xf")
        e(f"ds_write_b32 v{vSC}, v{r} offset:{j*64}")
    e(f"v_add_u32 v{vSC}, 256, v{vSC}")

e(f"s_mov_b32 s{sIT}, 0")
out.append("L_kloop:")
k_iter(SRD_K, vK, 128)
e(f"s_add_u32 s{sIT}, s{sIT}, 1")
e(f"s_cmp_lt_u32 s{sIT}, 3")
e("s_cbranch_scc1 L_kloop")
e(f"s_mov_b32 s{sREF}, 0")
k_iter(SRD_V, vV, 256)
stamp(2)

X = B + 40
M0 = B + 44; M1 = B + 45; L0 = B + 46; L1 = B + 47
U0 = B + 48; U1 = B + 49
PB = B + 50
e(f"s_lshl_b32 s{sT0}, s{sW}, 10")
e(f"s_add_u32 s{sT0}, s{sT0}, {L_SC}")
e(f"v_lshl_add_u32 v{vA5}, v{vL}, 4, s{sT0}")
e("s_waitcnt lgkmcnt(0)")
e(f"ds_read_b128 {vr(X,4)}, v{vA5}")
c("meanwhile: pre-permute the dedicated wo rows (0,1),(2,3) and the x1 parts")
def perm_pair(a, b, tmp):
    e(f"v_perm_b32 v{tmp}, v{b}, v{a}, s{sSELLO}")
    e(f"v_perm_b32 v{b}, v{b}, v{a}, s{sSELHI}")
    e(f"v_mov_b32 v{a}, v{tmp}")
for pr_ in range(2):
    for blk in range(2):
        for i in range(4):
            perm_pair(wo4_reg(2*pr_, blk) + i, wo4_reg(2*pr_+1, blk) + i, T + (i & 3))
for pr_ in range(4):
    perm_pair(wo1_reg(2*pr_), wo1_reg(2*pr_+1), T + pr_)
e("s_waitcnt lgkmcnt(0)")
def round_bf16_4():
    e(f"v_cvt_pk_bf16_f32 v{U0}, v{X}, v{X+1}")
    e(f"v_cvt_pk_bf16_f32 v{U1}, v{X+2}, v{X+3}")
    e(f"v_lshlrev_b32 v{X}, 16, v{U0}")
    e(f"v_and_b32 v{X+1}, s{sMASKHI}, v{U0}")
    e(f"v_lshlrev_b32 v{X+2}, 16, v{U1}")
    e(f"v_and_b32 v{X+3}, s{sMASKHI}, v{U1}")
round_bf16_4()
for i in range(4):
    e(f"v_mul_f32 v{X+i}, s{sSCALE}, v{X+i}")
round_bf16_4()
e(f"v_max_f32 v{M0}, v{X}, v{X+2}")
e(f"v_max_f32 v{M1}, v{X+1}, v{X+3}")

def row_reduce2(op, a, b):
    for pat in ("quad_perm:[1,0,3,2]", "quad_perm:[2,3,0,1]", "row_half_mirror", "row_mirror"):
        e("s_nop 1")
        e(f"{op}_dpp v{a}, v{a}, v{a} {pat} row_mask:0xf bank_mask:0xf")
        e(f"{op}_dpp v{b}, v{b}, v{b} {pat} row_mask:0xf bank_mask:0xf")
def cross_rows2(op, a, b, ta, tb):
    for sw in ("v_permlane16_swap_b32", "v_permlane32_swap_b32"):
        e(f"v_mov_b32 v{ta}, v{a}")
        e(f"v_mov_b32 v{tb}, v{b}")
        e("s_nop 1")
        e(f"{sw} v{a}, v{ta}")
        e(f"{sw} v{b}, v{tb}")
        e("s_nop 1")
        e(f"{op} v{a}, v{a}, v{ta}")
        e(f"{op} v{b}, v{b}, v{tb}")
row_reduce2("v_max_f32", M0, M1)
cross_rows2("v_max_f32", M0, M1, U0, U1)
for i in range(4):
    e(f"v_sub_f32 v{X+i}, v{X+i}, v{M0 + (i&1)}")
for i in range(4):
    e(f"v_mul_f32 v{X+i}, s{sLOG2E}, v{X+i}")
for i in range(4):
    e(f"v_exp_f32 v{X+i}, v{X+i}")
e("s_nop 0")
e(f"v_add_f32 v{L0}, v{X}, v{X+2}")
e(f"v_add_f32 v{L1}, v{X+1}, v{X+3}")
e(f"v_cvt_pk_bf16_f32 v{PB}, v{X}, v{X+2}")
e(f"v_cvt_pk_bf16_f32 v{PB+1}, v{X+1}, v{X+3}")
e(f"v_lshl_add_u32 v{vA5}, v{vL}, 3, s{sT0}")
e(f"ds_write_b64 v{vA5}, {vr(PB,2)}")
row_reduce2("v_add_f32", L0, L1)
cross_rows2("v_add_f32", L0, L1, U0, U1)
c("wave stats -> LDS ST[w] = (m0,l0,m1,l1); arrival counter")
e(f"v_mov_b32 v{X}, v{M0}")
e(f"v_mov_b32 v{X+1}, v{L0}")
e(f"v_mov_b32 v{X+2}, v{M1}")
e(f"v_mov_b32 v{X+3}, v{L1}")
e(f"s_lshl_b32 s{sT1}, s{sW}, 4")
e(f"v_mov_b32 v{vA5}, s{sT1}")
e(f"v_mov_b32 v{vA6}, {L_CNT}")
e(f"v_mov_b32 v{vA7}, 1")
e("s_mov_b64 exec, 1")
e(f"ds_write_b128 v{vA5}, {vr(X,4)} offset:{L_ST}")
e(f"ds_add_rtn_u32 v{U0}, v{vA6}, v{vA7}")
e("s_mov_b64 exec, -1")
c("P read address: SC_w + (l>>4)*8")
e(f"v_lshrrev_b32 v{vSC}, 4, v{vL}")
e(f"v_lshl_add_u32 v{vSC}, v{vSC}, 3, s{sT0}")
for i in range(16):
    e(f"v_mov_b32 v{A+i}, 0")
e("s_waitcnt lgkmcnt(0)")
e(f"v_readfirstlane_b32 s{sROLE}, v{U0}")
e("s_nop 3")
e(f"s_cmp_lg_u32 s{sROLE}, 15")
e("s_cbranch_scc1 L_notpub")
c("publisher: combine 16 wave stats, store WG stats")
e(f"v_and_b32 v{vA5}, 15, v{vL}")
e(f"v_lshlrev_b32 v{vA5}, 4, v{vA5}")
e(f"ds_read_b128 {vr(X,4)}, v{vA5} offset:{L_ST}")
e("s_waitcnt lgkmcnt(0)")
def combine_stats_row():
    e(f"v_mov_b32 v{M0}, v{X}")
    e(f"v_mov_b32 v{M1}, v{X+2}")
    row_reduce2("v_max_f32", M0, M1)
    e(f"v_sub_f32 v{U0}, v{X}, v{M0}")
    e(f"v_sub_f32 v{U1}, v{X+2}, v{M1}")
    e(f"v_mul_f32 v{U0}, s{sLOG2E}, v{U0}")
    e(f"v_mul_f32 v{U1}, s{sLOG2E}, v{U1}")
    e(f"v_exp_f32 v{U0}, v{U0}")
    e(f"v_exp_f32 v{U1}, v{U1}")
    e("s_nop 0")
    e(f"v_mul_f32 v{L0}, v{U0}, v{X+1}")
    e(f"v_mul_f32 v{L1}, v{U1}, v{X+3}")
    row_reduce2("v_add_f32", L0, L1)
combine_stats_row()
e(f"v_mov_b32 v{X}, v{M0}")
e(f"v_mov_b32 v{X+1}, v{L0}")
e(f"v_mov_b32 v{X+2}, v{M1}")
e(f"v_mov_b32 v{X+3}, v{L1}")
e(f"s_lshl_b32 s{sT1}, s{sGRP}, 7")
e(f"s_lshl_b32 s{sT2}, s{sSPLIT}, 4")
e(f"s_add_u32 s{sT1}, s{sT1}, s{sT2}")
e(f"v_mov_b32 v{vA5}, s{sT1}")
e("s_mov_b64 exec, 1")
e(f"buffer_store_dwordx4 {vr(X,4)}, v{vA5}, {srd(SRD_WS)}, 0 offen offset:{WS_STATS} sc1")
e("s_mov_b64 exec, -1")
e("s_nop 1")
out.append("L_notpub:")

CNTV = B + 58
GST = B + 40
def v_iter(last):
    for j in range(4):
        e(f"ds_read_b64 {vr(PB+2*j,2)}, v{vSC} offset:{j*32}")
    for j in range(4):
        E = S + 8 * j; O = E + 4
        if j == 0:
            e("s_waitcnt vmcnt(6) lgkmcnt(0)")
        else:
            e("s_waitcnt vmcnt(6)")
        for i in range(4):
            e(f"v_perm_b32 v{T+2*i}, v{O+i}, v{E+i}, s{sSELLO}")
            e(f"v_perm_b32 v{T+2*i+1}, v{O+i}, v{E+i}, s{sSELHI}")
        if not last:
            kload(j, SRD_V, vV, f"s{sREF}", 256)
            e(f"s_add_u32 s{sREF}, s{sREF}, {P['TS']}")
        else:
            r = 4 + 2 * (j >> 1); blk = j & 1
            for rr, dst in ((r, E), (r + 1, O)):
                so, io = wo_off(rr, blk * 512)
                e(f"buffer_load_dwordx4 {vr(dst,4)}, v{vWO}, {srd(SRD_WO)}, {so} offen offset:{io}")
        for i in range(8):
            e(f"v_dot2c_f32_bf16 v{A+i}, v{PB+2*j}, v{T+i}")
            e(f"v_dot2c_f32_bf16 v{A+8+i}, v{PB+2*j+1}, v{T+i}")
    e(f"v_add_u32 v{vSC}, 128, v{vSC}")

e(f"s_mov_b32 s{sIT}, 0")
out.append("L_vloop:")
v_iter(False)
c("hooks")
e(f"s_cmp_eq_u32 s{sROLE}, 15")
e("s_cbranch_scc1 L_hook_pub")
e(f"s_cmp_eq_u32 s{sROLE}, 0")
e("s_cbranch_scc1 L_hook_poll")
out.append("L_hook_done:")
e(f"s_add_u32 s{sIT}, s{sIT}, 1")
e(f"s_cmp_lt_u32 s{sIT}, 3")
e("s_cbranch_scc1 L_vloop")
v_iter(True)
stamp(3)

c("reduce acc over the 4 rows")
e("s_nop 3")
for i in range(8):
    e(f"v_permlane32_swap_b32 v{A+i}, v{A+8+i}")
e("s_nop 1")
for i in range(8):
    e(f"v_add_f32 v{A+i}, v{A+i}, v{A+8+i}")
e("s_nop 1")
for i in range(4):
    e(f"v_permlane16_swap_b32 v{A+i}, v{A+4+i}")
e("s_nop 1")
for i in range(4):
    e(f"v_add_f32 v{A+i}, v{A+i}, v{A+4+i}")
c("o index = (l>>5)*128 + (l&15)*8 + ((l>>4)&1)*4")
e(f"v_lshrrev_b32 v{vA5}, 5, v{vL}")
e(f"v_lshlrev_b32 v{vA5}, 9, v{vA5}")
e(f"v_and_b32 v{vA6}, 15, v{vL}")
e(f"v_lshl_add_u32 v{vA5}, v{vA6}, 5, v{vA5}")
e(f"v_and_b32 v{vA6}, 16, v{vL}")
e(f"v_add_u32 v{vA5}, v{vA6}, v{vA5}")
e(f"s_mul_i32 s{sT0}, s{sW}, {OP_STRIDE}")
e(f"v_add_u32 v{vA5}, s{sT0}, v{vA5}")
e(f"ds_write_b128 v{vA5}, {vr(A,4)} offset:{L_OP}")
e("s_waitcnt vmcnt(0)")
c("poller: global stats -> factor table")
e(f"s_cmp_lg_u32 s{sROLE}, 0")
e("s_cbranch_scc1 L_nofac")
combine_stats_row()
e(f"v_mul_f32 v{L0}, 0.5, v{L0}")
e(f"v_mul_f32 v{L1}, 0.5, v{L1}")
e(f"v_rcp_f32 v{L0}, v{L0}")
e(f"v_rcp_f32 v{L1}, v{L1}")
c("lane l<32: h = l>>4, wv = l&15 : f = exp2((m_wv,h - M_h)*log2e) * invL_h")
e(f"v_and_b32 v{vA5}, 15, v{vL}")
e(f"v_lshlrev_b32 v{vA5}, 4, v{vA5}")
e(f"v_and_b32 v{vA6}, 16, v{vL}")
e(f"v_lshrrev_b32 v{vA7}, 1, v{vA6}")
e(f"v_add_u32 v{vA5}, v{vA7}, v{vA5}")
e(f"ds_read_b32 v{U0}, v{vA5} offset:{L_ST}")
e(f"v_cmp_ne_u32 vcc, 0, v{vA6}")
e("s_nop 1")
e(f"v_cndmask_b32 v{M0}, v{M0}, v{M1}, vcc")
e(f"v_cndmask_b32 v{L0}, v{L0}, v{L1}, vcc")
e("s_waitcnt lgkmcnt(0)")
e(f"v_sub_f32 v{U0}, v{U0}, v{M0}")
e(f"v_mul_f32 v{U0}, s{sLOG2E}, v{U0}")
e(f"v_exp_f32 v{U0}, v{U0}")
e(f"v_and_b32 v{vA5}, 31, v{vL}")
e(f"v_lshlrev_b32 v{vA5}, 2, v{vA5}")
e(f"v_mul_f32 v{U0}, v{U0}, v{L0}")
e(f"ds_write_b32 v{vA5}, v{U0} offset:{L_FT}")
out.append("L_nofac:")
c("permute wo tail rows (4,5),(6,7) in the stream slots")
for j in range(4):
    E = S + 8 * j; O = E + 4
    for i in range(4):
        perm_pair(E + i, O + i, T + i)
c("addresses for the o combine")
e(f"v_lshrrev_b32 v{vA5}, 4, v{vL}")
e(f"v_mul_u32_u24 v{vA6}, {4*OP_STRIDE}, v{vA5}")
e(f"v_and_b32 v{vA7}, 15, v{vL}")
e(f"v_lshl_add_u32 v{vA6}, v{vA7}, 2, v{vA6}")
e(f"s_lshl_b32 s{sT0}, s{sW}, 6")
e(f"v_add_u32 v{vA6}, s{sT0}, v{vA6}")
e(f"s_lshr_b32 s{sT1}, s{sW}, 3")
e(f"s_lshl_b32 s{sT1}, s{sT1}, 6")
e(f"v_lshl_add_u32 v{vA5}, v{vA5}, 4, s{sT1}")
e("s_waitcnt lgkmcnt(0)")
e("s_barrier")
for i in range(4):
    e(f"ds_read_b32 v{T+i}, v{vA6} offset:{L_OP + i*OP_STRIDE}")
e(f"ds_read_b128 {vr(X,4)}, v{vA5} offset:{L_FT}")
Y = A
def yreg(i): return A + i if i < 16 else U0 + (i - 16)
for i in range(18):
    e(f"v_mov_b32 v{yreg(i)}, 0")
e("s_waitcnt lgkmcnt(0)")
e(f"v_mul_f32 v{T}, v{T}, v{X}")
e(f"v_fmac_f32 v{T}, v{T+1}, v{X+1}")
e(f"v_fmac_f32 v{T}, v{T+2}, v{X+2}")
e(f"v_fmac_f32 v{T}, v{T+3}, v{X+3}")
for sw in ("v_permlane16_swap_b32", "v_permlane32_swap_b32"):
    e(f"v_mov_b32 v{T+1}, v{T}")
    e("s_nop 1")
    e(f"{sw} v{T}, v{T+1}")
    e("s_nop 1")
    e(f"v_add_f32 v{T}, v{T}, v{T+1}")
e("s_nop 1")
e(f"v_mov_b32_dpp v{T+1}, v{T} quad_perm:[1,0,3,2] row_mask:0xf bank_mask:0xf")
e(f"v_cvt_pk_bf16_f32 v{T}, v{T}, v{T+1}")
e("s_nop 1")
OPJ = T + 2
for j in range(4):
    e(f"v_mov_b32_dpp v{OPJ+j}, v{T} row_newbcast:{2*j} row_mask:0x3 bank_mask:0xf")
    e(f"v_mov_b32_dpp v{OPJ+j}, v{T} row_newbcast:{8+2*j} row_mask:0xc bank_mask:0xf")
c("GEMV")
def wp(j, blk, i, hi):
    if j < 2:
        return wo4_reg(2*j + hi, blk) + i
    jj = (j - 2) * 2 + blk
    return S + 8 * jj + 4 * hi + i
for j in range(4):
    for blk in range(2):
        for i in range(4):
            for hi in range(2):
                e(f"v_dot2c_f32_bf16 v{yreg(blk*8 + 2*i + hi)}, v{OPJ+j}, v{wp(j,blk,i,hi)}")
    for hi in range(2):
        e(f"v_dot2c_f32_bf16 v{yreg(16+hi)}, v{OPJ+j}, v{wo1_reg(2*j+hi)}")
c("y address: YP + w*2304 + (8*c32 + 4*hf)*4 ; tail: 2048 + (2*c32+hf)*4")
e(f"s_mul_i32 s{sT0}, s{sW}, 2304")
e(f"v_and_b32 v{vA5}, 31, v{vL}")
e(f"v_lshrrev_b32 v{vA6}, 5, v{vL}")
e(f"v_lshl_add_u32 v{vA7}, v{vA5}, 1, v{vA6}")
e(f"v_lshl_add_u32 v{vA5}, v{vA7}, 4, s{sT0}")
e(f"v_lshl_add_u32 v{vA7}, v{vA7}, 2, s{sT0}")
for blk in range(2):
    for i in range(4):
        e(f"v_permlane32_swap_b32 v{yreg(blk*8+i)}, v{yreg(blk*8+4+i)}")
e(f"v_permlane32_swap_b32 v{yreg(16)}, v{yreg(17)}")
e("s_nop 1")
for blk in range(2):
    for i in range(4):
        e(f"v_add_f32 v{yreg(blk*8+i)}, v{yreg(blk*8+i)}, v{yreg(blk*8+4+i)}")
e(f"v_add_f32 v{yreg(16)}, v{yreg(16)}, v{yreg(17)}")
e(f"ds_write_b128 v{vA5}, {vr(yreg(0),4)} offset:{L_YP}")
e(f"ds_write_b128 v{vA5}, {vr(yreg(8),4)} offset:{L_YP+1024}")
e(f"ds_write_b32 v{vA7}, v{yreg(16)} offset:{L_YP+2048}")
c("y sum addresses: YP + (4*(l>>4))*2304 + (w*16 + (l&15))*16")
e(f"v_lshrrev_b32 v{vA5}, 4, v{vL}")
e(f"v_mul_u32_u24 v{vA5}, {4*2304}, v{vA5}")
e(f"v_and_b32 v{vA6}, 15, v{vL}")
e(f"s_lshl_b32 s{sT0}, s{sW}, 4")
e(f"v_add_u32 v{vA6}, s{sT0}, v{vA6}")
e(f"v_lshl_add_u32 v{vA5}, v{vA6}, 4, v{vA5}")
c("global y address: WS_Y + pr*YPR + (q4>>3)*16384 + pidx*128 + (q4&7)*16")
e(f"s_mul_i32 s{sT0}, s{sPR}, {WS_YPR}")
e(f"s_lshl_b32 s{sT1}, s{sPIDX}, 7")
e(f"s_add_u32 s{sT0}, s{sT0}, s{sT1}")
e(f"s_add_u32 s{sT0}, s{sT0}, {WS_Y}")
e(f"v_lshrrev_b32 v{vA7}, 3, v{vA6}")
e(f"v_lshlrev_b32 v{vA7}, 14, v{vA7}")
e(f"v_and_b32 v{vA6}, 7, v{vA6}")
e(f"v_lshl_add_u32 v{vA7}, v{vA6}, 4, v{vA7}")
e(f"v_add_u32 v{vA7}, s{sT0}, v{vA7}")
e("s_waitcnt lgkmcnt(0)")
e("s_barrier")
e(f"s_cmp_ge_u32 s{sW}, 9")
e("s_cbranch_scc1 L_ydone")
for i in range(4):
    e(f"ds_read_b128 {vr(A+4*i,4)}, v{vA5} offset:{L_YP + i*2304}")
e("s_waitcnt lgkmcnt(0)")
for k in range(4):
    e(f"v_add_f32 v{A+k}, v{A+k}, v{A+4+k}")
    e(f"v_add_f32 v{A+8+k}, v{A+8+k}, v{A+12+k}")
for k in range(4):
    e(f"v_add_f32 v{A+k}, v{A+k}, v{A+8+k}")
for sw in ("v_permlane16_swap_b32", "v_permlane32_swap_b32"):
    for k in range(4):
        e(f"v_mov_b32 v{A+4+k}, v{A+k}")
    e("s_nop 1")
    for k in range(4):
        e(f"{sw} v{A+k}, v{A+4+k}")
    e("s_nop 1")
    for k in range(4):
        e(f"v_add_f32 v{A+k}, v{A+k}, v{A+4+k}")
c("never publish the sentinel bit pattern")
e(f"v_mov_b32 v{A+4}, 0x7fc00000")
for k in range(4):
    e(f"v_cmp_eq_u32 vcc, -1, v{A+k}")
    e("s_nop 1")
    e(f"v_cndmask_b32 v{A+k}, v{A+k}, v{A+4}, vcc")
e("s_mov_b64 exec, 0xffff")
e(f"buffer_store_dwordx4 {vr(A,4)}, v{vA7}, {srd(SRD_WS)}, 0 offen sc1")
e("s_mov_b64 exec, -1")
e("s_nop 1")
out.append("L_ydone:")
stamp(4)
e(f"s_cmp_ge_u32 s{sPIDX}, 18")
e("s_cbranch_scc1 L_end")

e(f"s_mul_i32 s{sT0}, s{sPR}, {WS_YPR}")
e(f"s_lshl_b32 s{sT1}, s{sPIDX}, 14")
e(f"s_add_u32 s{sT0}, s{sT0}, s{sT1}")
e(f"s_add_u32 s{sT0}, s{sT0}, {WS_Y}")
e(f"v_lshlrev_b32 v{vA6}, 4, v0")
e(f"v_add_u32 v{vA6}, s{sT0}, v{vA6}")
e(f"s_mov_b32 s{sSPIN}, 0")
out.append("L_cpoll:")
e(f"buffer_load_dwordx4 {vr(A,4)}, v{vA6}, {srd(SRD_WS)}, 0 offen sc1")
e(f"s_add_u32 s{sSPIN}, s{sSPIN}, 1")
e("s_waitcnt vmcnt(0)")
e(f"v_max_u32 v{A+4}, v{A}, v{A+1}")
e(f"v_max_u32 v{A+5}, v{A+2}, v{A+3}")
e(f"v_max_u32 v{A+4}, v{A+4}, v{A+5}")
e(f"v_cmp_eq_u32 vcc, -1, v{A+4}")
e("s_nop 3")
e("s_cmp_eq_u64 vcc, 0")
e("s_cbranch_scc1 L_cgot")
e(f"s_cmp_lt_u32 s{sSPIN}, {P['SPIN']}")
e("s_cbranch_scc1 L_cpoll")
out.append("L_cgot:")
for k in range(4):
    e(f"v_add_f32_dpp v{A+k}, v{A+k}, v{A+k} row_ror:8 row_mask:0xf bank_mask:0xf")
for sw in ("v_permlane16_swap_b32", "v_permlane32_swap_b32"):
    for k in range(4):
        e(f"v_mov_b32 v{A+4+k}, v{A+k}")
    e("s_nop 1")
    for k in range(4):
        e(f"{sw} v{A+k}, v{A+4+k}")
    e("s_nop 1")
    for k in range(4):
        e(f"v_add_f32 v{A+k}, v{A+k}, v{A+4+k}")
e(f"s_lshl_b32 s{sT0}, s{sW}, 7")
e(f"v_lshl_add_u32 v{vA5}, v{vL}, 4, s{sT0}")
e("s_mov_b64 exec, 0xff")
e(f"ds_write_b128 v{vA5}, {vr(A,4)} offset:{L_FR}")
e("s_mov_b64 exec, -1")
e("s_waitcnt lgkmcnt(0)")
e("s_barrier")
e(f"s_cmp_lg_u32 s{sW}, 0")
e("s_cbranch_scc1 L_end")
e(f"v_and_b32 v{vA5}, 31, v{vL}")
e(f"v_lshlrev_b32 v{vA6}, 2, v{vA5}")
for w in range(16):
    e(f"ds_read_b32 v{A+w}, v{vA6} offset:{L_FR + w*128}")
e(f"s_mul_i32 s{sT0}, s{sPR}, 1152")
e(f"s_lshl_b32 s{sT1}, s{sPIDX}, 6")
e(f"s_add_u32 s{sT0}, s{sT0}, s{sT1}")
e(f"v_lshl_add_u32 v{vA5}, v{vA5}, 1, s{sT0}")
e("s_waitcnt lgkmcnt(0)")
for st in (8, 4, 2, 1):
    for i in range(st):
        e(f"v_add_f32 v{A+i}, v{A+i}, v{A+i+st}")
e(f"v_cvt_pk_bf16_f32 v{A}, v{A}, v{A}")
e("s_mov_b32 exec_hi, 0")
e(f"buffer_store_short v{A}, v{vA5}, {srd(SRD_OUT)}, 0 offen")
e("s_mov_b64 exec, -1")
stamp(5)
out.append("L_end:")
e("s_endpgm")

out.append("L_hook_pub:")
e(f"s_cmp_lg_u32 s{sIT}, 0")
e("s_cbranch_scc1 L_hook_done")
e(f"s_lshl_b32 s{sT1}, s{sPR}, 7")
e(f"v_mov_b32 v{vA5}, s{sT1}")
e(f"v_mov_b32 v{vA6}, 1")
e("s_mov_b64 exec, 1")
e(f"buffer_atomic_add v{vA6}, v{vA5}, {srd(SRD_DBG)}, 0 offen sc1")
e("s_mov_b64 exec, -1")
e("s_branch L_hook_done")

out.append("L_hook_poll:")
e(f"s_cmp_eq_u32 s{sIT}, 0")
e("s_cbranch_scc1 L_hook_done")
e(f"s_lshl_b32 s{sT1}, s{sPR}, 7")
e(f"v_mov_b32 v{vA5}, s{sT1}")
e(f"s_cmp_eq_u32 s{sIT}, 2")
e("s_cbranch_scc1 L_poll_check")
e(f"buffer_load_dword v{CNTV}, v{vA5}, {srd(SRD_DBG)}, 0 offen sc1")
e("s_branch L_hook_done")
out.append("L_poll_check:")
e(f"s_mov_b32 s{sSPIN}, 0")
out.append("L_poll_loop:")
e(f"v_readfirstlane_b32 s{sT2}, v{CNTV}")
e("s_nop 3")
e(f"s_cmp_ge_u32 s{sT2}, 128")
e("s_cbranch_scc1 L_poll_ok")
e(f"s_add_u32 s{sSPIN}, s{sSPIN}, 1")
e(f"s_cmp_ge_u32 s{sSPIN}, {P['SPIN']}")
e("s_cbranch_scc1 L_poll_ok")
e("s_sleep 2")
e(f"buffer_load_dword v{CNTV}, v{vA5}, {srd(SRD_DBG)}, 0 offen sc1")
e("s_waitcnt vmcnt(0)")
e("s_branch L_poll_loop")
out.append("L_poll_ok:")
e(f"s_lshl_b32 s{sT1}, s{sGRP}, 7")
e(f"v_and_b32 v{vA5}, 7, v{vL}")
e(f"v_lshl_add_u32 v{vA5}, v{vA5}, 4, s{sT1}")
e(f"buffer_load_dwordx4 {vr(X,4)}, v{vA5}, {srd(SRD_WS)}, 0 offen offset:{WS_STATS} sc1")
e("s_branch L_hook_done")

out.append('.section .rodata,"a"')
out.append(".p2align 6")
out.append(f".amdhsa_kernel {NAME}_kernel")
out.append("  .amdhsa_next_free_vgpr 128")
out.append("  .amdhsa_next_free_sgpr 102")
out.append("  .amdhsa_accum_offset 128")
out.append("  .amdhsa_group_segment_fixed_size 0")
out.append("  .amdhsa_kernarg_size 104")
out.append("  .amdhsa_user_sgpr_count 2")
out.append("  .amdhsa_user_sgpr_kernarg_segment_ptr 1")
out.append("  .amdhsa_system_sgpr_workgroup_id_x 1")
out.append(".end_amdhsa_kernel")

open(sys.argv[1], "w").write("\n".join(out) + "\n")
```

```python
import sys

NAME = "concat_heads__gqa_block_cached__gqa_block_cached__decode"

P = dict(
    NT=1,
    WS=2048,
    TS=32768,
    KFIRST=2,
    DIAG=0,
    SPIN=200000,
    GMAP=1,
    QBAR=0,
    WQP=0,
    WOP=0,
)
for a in sys.argv[2:]:
    k, v = a.split("=")
    P[k] = int(v)

out = []
def e(s=""):
    out.append("    " + s if s and not s.endswith(":") else s)
def c(s):
    out.append("    ; " + s)

POLS = ["", " nt", " sc1 nt", " sc0 sc1 nt", " sc0 nt", " sc1", " sc0 sc1", " sc0"]
NTS = POLS[P["NT"]]
WQS = POLS[P["WQP"]]
WOS = POLS[P["WOP"]]

sW = 3
sPR = 4; sKVH = 5; sSPLIT = 6; sPIDX = 7; sGRP = 8
sREF = 9
sIT = 10
sROLE = 11
sT0 = 12; sT1 = 13; sT2 = 14; sT3 = 15
sX = 42
SRD_K = 44; SRD_V = 48; SRD_WQ = 52; SRD_WO = 56; SRD_WS = 60; SRD_DBG = 64; SRD_OUT = 68
sXD = 72
sSELLO = 90; sSELHI = 91
sC3456 = 92; sC6912 = 93
sSCALE = 94; sLOG2E = 95
sSPIN = 96
sMASKHI = 97
sTS0 = 98
sEX = 100

def srd(n): return f"s[{n}:{n+3}]"

vTID = 0; vL = 1; vK = 2; vV = 3; vSC = 4; vA5 = 5; vA6 = 6; vA7 = 7
S = 8
A = 40
T = 56
B = 64
def v(n): return f"v{n}"
def vr(n, k): return f"v[{n}:{n+k-1}]"

L_QP = 0
OP_STRIDE = 1040
L_OP = 0
L_QB = 16896
L_ST = 17408
L_CNT = 17664
L_FT = 17680
L_SC = 17920
L_FR = L_OP
L_YP = L_SC
LDS_TOTAL = L_YP + 16 * 2304

WS_STATS = 0
WS_Y = 65536
WS_YPR = 18 * 16384
WS_SIZE = WS_Y + 2 * WS_YPR
WS_DIAG = 1 << 20

hdr = open("cdna_kernels/%s.s.ref" % NAME).read().split("\n")
for line in hdr:
    if line.startswith("; @launch"):
        break
    out.append(line)
out.append(f"; @launch grid=(256,1,1) block=(1024,1,1) lds={LDS_TOTAL}")
out.append('.amdgcn_target "amdgcn-amd-amdhsa--gfx950"')
out.append(".text")
out.append(f".globl {NAME}_kernel")
out.append(".p2align 8")
out.append(f".type {NAME}_kernel,@function")
out.append(f"{NAME}_kernel:")

def stamp(idx):
    if not P["DIAG"]:
        return
    e(f"s_memrealtime s[{sTS0}:{sTS0+1}]")
    e("s_waitcnt lgkmcnt(0)")
    e(f"v_mov_b32 v{vA6}, s{sTS0}")
    e(f"s_lshl_b32 s{sT3}, s2, 4")
    e(f"s_add_u32 s{sT3}, s{sT3}, s{sW}")
    e(f"s_lshl_b32 s{sT3}, s{sT3}, 5")
    e(f"s_add_u32 s{sT3}, s{sT3}, {WS_DIAG + idx*4}")
    e(f"v_mov_b32 v{vA7}, s{sT3}")
    e(f"buffer_store_dword v{vA6}, v{vA7}, {srd(SRD_WS)}, 0 offen")

e("s_cmp_ge_u32 s2, 256")
e("s_cbranch_scc1 L_end")
e("s_load_dwordx16 s[16:31], s[0:1], 0")
e("s_load_dwordx8 s[32:39], s[0:1], 64")
e("s_load_dwordx2 s[40:41], s[0:1], 96")
e(f"v_and_b32 v{vL}, 63, v0")
e(f"v_lshrrev_b32 v{vA5}, 6, v0")
if P["GMAP"] == 0:
    e(f"s_and_b32 s{sGRP}, s2, 31")
    e(f"v_readfirstlane_b32 s{sW}, v{vA5}")
else:
    c("group = (wg&7)*4 + ((wg>>3)&3): the 4 groups of one XCD cover 2 KiB contiguous of each wq row")
    e(f"s_and_b32 s{sGRP}, s2, 7")
    e(f"v_readfirstlane_b32 s{sW}, v{vA5}")
    e(f"s_lshl_b32 s{sGRP}, s{sGRP}, 2")
    e(f"s_lshr_b32 s{sT0}, s2, 3")
    e(f"s_and_b32 s{sT0}, s{sT0}, 3")
    e(f"s_add_u32 s{sGRP}, s{sGRP}, s{sT0}")
e(f"s_and_b32 s{sKVH}, s{sGRP}, 15")
e(f"s_lshr_b32 s{sPR}, s{sGRP}, 4")
e(f"s_lshr_b32 s{sSPLIT}, s2, 5")
e(f"s_lshl_b32 s{sPIDX}, s{sSPLIT}, 4")
e(f"s_add_u32 s{sPIDX}, s{sPIDX}, s{sKVH}")
e(f"s_mov_b32 s{sSELLO}, 0x05040100")
e(f"s_mov_b32 s{sSELHI}, 0x07060302")
e(f"s_mov_b32 s{sC3456}, 3456")
e(f"s_mov_b32 s{sC6912}, 6912")
e(f"s_mov_b32 s{sSCALE}, 0x3db504f3")
e(f"s_mov_b32 s{sLOG2E}, 0x3fb8aa3b")
e(f"s_mov_b32 s{sMASKHI}, 0xffff0000")
c("vK = (l>>3)*256 + (l&7)*16 + w*WS ; vV = (l>>4)*512 + (l&15)*16 + w*WS")
e(f"s_mul_i32 s{sT0}, s{sW}, {P['WS']}")
e(f"v_lshrrev_b32 v{vA5}, 3, v{vL}")
e(f"v_lshlrev_b32 v{vA5}, 8, v{vA5}")
e(f"v_and_b32 v{vA6}, 7, v{vL}")
e(f"v_lshl_add_u32 v{vK}, v{vA6}, 4, v{vA5}")
e(f"v_add_u32 v{vK}, s{sT0}, v{vK}")
e(f"v_lshrrev_b32 v{vA5}, 4, v{vL}")
e(f"v_lshlrev_b32 v{vA5}, 9, v{vA5}")
e(f"v_and_b32 v{vA6}, 15, v{vL}")
e(f"v_lshl_add_u32 v{vV}, v{vA6}, 4, v{vA5}")
e(f"v_add_u32 v{vV}, s{sT0}, v{vV}")
c("chunk byte offset = kvh*4MiB + split*512KiB")
e(f"s_lshl_b32 s{sT0}, s{sKVH}, 22")
e(f"s_lshl_b32 s{sT1}, s{sSPLIT}, 19")
e(f"s_add_u32 s{sT0}, s{sT0}, s{sT1}")
e("s_waitcnt lgkmcnt(0)")
e(f"s_cmp_eq_u32 s{sPR}, 1")
e(f"s_cselect_b32 s{sX}, s26, s16")
e(f"s_cselect_b32 s{sX+1}, s27, s17")
e(f"s_cselect_b32 s{SRD_K}, s28, s18")
e(f"s_cselect_b32 s{SRD_K+1}, s29, s19")
e(f"s_cselect_b32 s{SRD_V}, s30, s20")
e(f"s_cselect_b32 s{SRD_V+1}, s31, s21")
e(f"s_cselect_b32 s{SRD_WQ}, s32, s22")
e(f"s_cselect_b32 s{SRD_WQ+1}, s33, s23")
e(f"s_cselect_b32 s{SRD_WO}, s34, s24")
e(f"s_cselect_b32 s{SRD_WO+1}, s35, s25")
e(f"s_add_u32 s{SRD_K}, s{SRD_K}, s{sT0}")
e(f"s_addc_u32 s{SRD_K+1}, s{SRD_K+1}, 0")
e(f"s_add_u32 s{SRD_V}, s{SRD_V}, s{sT0}")
e(f"s_addc_u32 s{SRD_V+1}, s{SRD_V+1}, 0")
for n, sz in ((SRD_K, 524288), (SRD_V, 524288), (SRD_WQ, 4718592), (SRD_WO, 4718592)):
    e(f"s_and_b32 s{n+1}, s{n+1}, 0xffff")
    e(f"s_mov_b32 s{n+2}, {sz}")
    e(f"s_mov_b32 s{n+3}, 0x00020000")
wssz = WS_SIZE if not P["DIAG"] else WS_DIAG + 256 * 512
for n, src, sz in ((SRD_WS, 40, wssz), (SRD_DBG, 38, 256), (SRD_OUT, 36, 2304)):
    e(f"s_mov_b32 s{n}, s{src}")
    e(f"s_and_b32 s{n+1}, s{src+1}, 0xffff")
    e(f"s_mov_b32 s{n+2}, {sz}")
    e(f"s_mov_b32 s{n+3}, 0x00020000")
c("x dwords for this wave: 18 dwords at x + 72*w")
e(f"s_mul_i32 s{sT1}, s{sW}, 72")
e(f"s_load_dwordx16 s[{sXD}:{sXD+15}], s[{sX}:{sX+1}], s{sT1}")
e(f"s_add_u32 s{sT1}, s{sT1}, 64")
e(f"s_load_dwordx2 s[{sXD+16}:{sXD+17}], s[{sX}:{sX+1}], s{sT1}")
stamp(0)

def kload(slot_pair, srdn, voff, soff, odd_off):
    r = S + 8 * slot_pair
    e(f"buffer_load_dwordx4 {vr(r,4)}, v{voff}, {srd(srdn)}, {soff} offen{NTS}")
    e(f"buffer_load_dwordx4 {vr(r+4,4)}, v{voff}, {srd(srdn)}, {soff} offen offset:{odd_off}{NTS}")

e(f"s_mov_b32 s{sREF}, 0")
for j in range(P["KFIRST"]):
    kload(j, SRD_K, vK, f"s{sREF}", 128)
    e(f"s_add_u32 s{sREF}, s{sREF}, {P['TS']}")

c("wq voffset = kvh*512 + l*8 + w*36*8192")
e(f"s_mul_i32 s{sT0}, s{sW}, {36*8192}")
e(f"s_lshl_b32 s{sT1}, s{sKVH}, 9")
e(f"s_add_u32 s{sT0}, s{sT0}, s{sT1}")
e(f"v_lshlrev_b32 v{vA5}, 3, v{vL}")
e(f"v_add_u32 v{vA5}, s{sT0}, v{vA5}")
def wq_reg(r):
    return B + 2 * r if r < 32 else A + 2 * (r - 32)
e(f"s_mov_b32 s{sT2}, 0")
for r in range(36):
    e(f"buffer_load_dwordx2 {vr(wq_reg(r),2)}, v{vA5}, {srd(SRD_WQ)}, s{sT2} offen{WQS}")
    if r != 35:
        e(f"s_add_u32 s{sT2}, s{sT2}, 8192")
if P["QBAR"]:
    e("s_barrier")
for j in range(P["KFIRST"], 4):
    kload(j, SRD_K, vK, f"s{sREF}", 128)
    e(f"s_add_u32 s{sREF}, s{sREF}, {P['TS']}")
KLATE = 2 * (4 - P["KFIRST"])

c("sentinel init of this consumer's y block")
e(f"s_cmp_ge_u32 s{sPIDX}, 18")
e("s_cbranch_scc1 L_nosent")
e(f"s_mul_i32 s{sT0}, s{sPR}, {WS_YPR}")
e(f"s_lshl_b32 s{sT1}, s{sPIDX}, 14")
e(f"s_add_u32 s{sT0}, s{sT0}, s{sT1}")
e(f"s_add_u32 s{sT0}, s{sT0}, {WS_Y}")
e(f"v_lshlrev_b32 v{vA6}, 4, v0")
e(f"v_add_u32 v{vA6}, s{sT0}, v{vA6}")
for i in range(4):
    e(f"v_mov_b32 v{T+i}, -1")
e(f"buffer_store_dwordx4 {vr(T,4)}, v{vA6}, {srd(SRD_WS)}, 0 offen sc1")
e("s_nop 1")
out.append("L_nosent:")

e(f"v_mov_b32 v{vA6}, {L_CNT}")
e(f"v_mov_b32 v{vA7}, 0")
e(f"ds_write_b32 v{vA6}, v{vA7}")

QA = A + 8
for i in range(4):
    e(f"v_mov_b32 v{QA+i}, 0")
e("s_waitcnt lgkmcnt(0)")
for i in range(18):
    if i % 3 == 0:
        left = 36 - 2 * (i + 3)
        e(f"s_waitcnt vmcnt({left + KLATE})")
    a = wq_reg(2 * i); b = wq_reg(2 * i + 1)
    t = T + 4 * (i & 1)
    e(f"v_perm_b32 v{t}, v{b}, v{a}, s{sSELLO}")
    e(f"v_perm_b32 v{t+1}, v{b}, v{a}, s{sSELHI}")
    e(f"v_perm_b32 v{t+2}, v{b+1}, v{a+1}, s{sSELLO}")
    e(f"v_perm_b32 v{t+3}, v{b+1}, v{a+1}, s{sSELHI}")
    for k in range(4):
        e(f"v_dot2c_f32_bf16 v{QA+k}, s{sXD+i}, v{t+k}")
c("wo: vA6 = (kvh*256+16w+8hf)*1152 + c32*16 ; vA7 = same row base + 1024 + c32*4")
e(f"s_lshl_b32 s{sT0}, s{sKVH}, 8")
e(f"s_lshl_b32 s{sT1}, s{sW}, 4")
e(f"s_add_u32 s{sT0}, s{sT0}, s{sT1}")
e(f"s_mul_i32 s{sT0}, s{sT0}, 1152")
e(f"v_lshrrev_b32 v{vA5}, 5, v{vL}")
e(f"v_mul_u32_u24 v{vA5}, {8*1152}, v{vA5}")
e(f"v_add_u32 v{vA5}, s{sT0}, v{vA5}")
e(f"v_and_b32 v{vA7}, 31, v{vL}")
e(f"v_lshl_add_u32 v{B+62}, v{vA7}, 4, v{vA5}")
e(f"v_lshl_add_u32 v{vA7}, v{vA7}, 2, v{vA5}")
vWO = B + 62
def wo_off(r, extra):
    if r < 3: return "0", r * 1152 + extra
    if r < 6: return f"s{sC3456}", (r - 3) * 1152 + extra
    return f"s{sC6912}", (r - 6) * 1152 + extra
def wo4_reg(r, blk):
    return B + (r * 2 + blk) * 4
def wo1_reg(r):
    return B + 32 + r
e(f"v_lshlrev_b32 v{vA5}, 4, v0")
e(f"ds_write_b128 v{vA5}, {vr(QA,4)} offset:{L_QP}")
for r in range(4):
    for blk in range(2):
        so, io = wo_off(r, blk * 512)
        e(f"buffer_load_dwordx4 {vr(wo4_reg(r,blk),4)}, v{vWO}, {srd(SRD_WO)}, {so} offen offset:{io}{WOS}")
for r in range(8):
    so, io = wo_off(r, 1024)
    e(f"buffer_load_dword v{wo1_reg(r)}, v{vA7}, {srd(SRD_WO)}, {so} offen offset:{io}{WOS}")
e("s_waitcnt lgkmcnt(0)")
e("s_barrier")
e(f"s_cmp_ge_u32 s{sW}, 4")
e("s_cbranch_scc1 L_q2done")
e(f"v_lshlrev_b32 v{vA5}, 2, v0")
for w in range(16):
    e(f"ds_read_b32 v{A+w}, v{vA5} offset:{L_QP + w*1024}")
e(f"v_lshlrev_b32 v{vA6}, 1, v0")
e("s_waitcnt lgkmcnt(0)")
for st in (8, 4, 2, 1):
    for i in range(st):
        e(f"v_add_f32 v{A+i}, v{A+i}, v{A+i+st}")
e(f"v_cvt_pk_bf16_f32 v{A}, v{A}, v{A}")
e(f"ds_write_b16 v{vA6}, v{A} offset:{L_QB}")
e("s_waitcnt lgkmcnt(0)")
out.append("L_q2done:")
e("s_barrier")
e(f"v_and_b32 v{vA5}, 7, v{vL}")
e(f"v_lshlrev_b32 v{vA5}, 4, v{vA5}")
for h in range(2):
    for half in range(2):
        e(f"ds_read_b128 {vr(A + h*8 + half*4, 4)}, v{vA5} offset:{L_QB + h*256 + half*128}")
c("score write address: SC + w*1024 + (l>>2)*4")
e(f"s_lshl_b32 s{sT0}, s{sW}, 10")
e(f"s_add_u32 s{sT0}, s{sT0}, {L_SC}")
e(f"v_lshrrev_b32 v{vSC}, 2, v{vL}")
e(f"v_lshl_add_u32 v{vSC}, v{vSC}, 2, s{sT0}")
e("s_waitcnt lgkmcnt(0)")
stamp(1)

def k_iter(ref_srd, ref_voff, ref_odd):
    for j in range(4):
        E = S + 8 * j; O = E + 4
        h0 = T + 2 * (j & 1); h1 = h0 + 1; r = T + 4 + (j & 1)
        e("s_waitcnt vmcnt(6)")
        e(f"v_mov_b32 v{h0}, 0")
        e(f"v_mov_b32 v{h1}, 0")
        for i in range(4):
            e(f"v_dot2c_f32_bf16 v{h0}, v{E+i}, v{A+i}")
            e(f"v_dot2c_f32_bf16 v{h1}, v{E+i}, v{A+8+i}")
        for i in range(4):
            e(f"v_dot2c_f32_bf16 v{h0}, v{O+i}, v{A+4+i}")
            e(f"v_dot2c_f32_bf16 v{h1}, v{O+i}, v{A+12+i}")
        kload(j, ref_srd, ref_voff, f"s{sREF}", ref_odd)
        e(f"s_add_u32 s{sREF}, s{sREF}, {P['TS']}")
        e("s_nop 0")
        e(f"v_add_f32_dpp v{r}, v{h0}, v{h0} row_shl:4 row_mask:0xf bank_mask:0x5")
        e(f"v_add_f32_dpp v{r}, v{h1}, v{h1} row_shr:4 row_mask:0xf bank_mask:0xa")
        e("s_nop 1")
        e(f"v_add_f32_dpp v{r}, v{r}, v{r} quad_perm:[1,0,3,2] row_mask:0xf bank_mask:0xf")
        e("s_nop 1")
        e(f"v_add_f32_dpp v{r}, v{r}, v{r} quad_perm:[2,3,0,1] row_mask:0xf bank_mask:0xf")
        e(f"ds_write_b32 v{vSC}, v{r} offset:{j*64}")
    e(f"v_add_u32 v{vSC}, 256, v{vSC}")

e(f"s_mov_b32 s{sIT}, 0")
out.append("L_kloop:")
k_iter(SRD_K, vK, 128)
e(f"s_add_u32 s{sIT}, s{sIT}, 1")
e(f"s_cmp_lt_u32 s{sIT}, 3")
e("s_cbranch_scc1 L_kloop")
e(f"s_mov_b32 s{sREF}, 0")
k_iter(SRD_V, vV, 256)
stamp(2)

X = B + 40
M0 = B + 44; M1 = B + 45; L0 = B + 46; L1 = B + 47
U0 = B + 48; U1 = B + 49
PB = B + 50
e(f"s_lshl_b32 s{sT0}, s{sW}, 10")
e(f"s_add_u32 s{sT0}, s{sT0}, {L_SC}")
e(f"v_lshl_add_u32 v{vA5}, v{vL}, 4, s{sT0}")
e("s_waitcnt lgkmcnt(0)")
e(f"ds_read_b128 {vr(X,4)}, v{vA5}")
c("meanwhile: pre-permute the dedicated wo rows (0,1),(2,3) and the x1 parts")
def perm_pair(a, b, tmp):
    e(f"v_perm_b32 v{tmp}, v{b}, v{a}, s{sSELLO}")
    e(f"v_perm_b32 v{b}, v{b}, v{a}, s{sSELHI}")
    e(f"v_mov_b32 v{a}, v{tmp}")
for pr_ in range(2):
    for blk in range(2):
        for i in range(4):
            perm_pair(wo4_reg(2*pr_, blk) + i, wo4_reg(2*pr_+1, blk) + i, T + (i & 3))
for pr_ in range(4):
    perm_pair(wo1_reg(2*pr_), wo1_reg(2*pr_+1), T + pr_)
e("s_waitcnt lgkmcnt(0)")
def round_bf16_4():
    e(f"v_cvt_pk_bf16_f32 v{U0}, v{X}, v{X+1}")
    e(f"v_cvt_pk_bf16_f32 v{U1}, v{X+2}, v{X+3}")
    e(f"v_lshlrev_b32 v{X}, 16, v{U0}")
    e(f"v_and_b32 v{X+1}, s{sMASKHI}, v{U0}")
    e(f"v_lshlrev_b32 v{X+2}, 16, v{U1}")
    e(f"v_and_b32 v{X+3}, s{sMASKHI}, v{U1}")
round_bf16_4()
for i in range(4):
    e(f"v_mul_f32 v{X+i}, s{sSCALE}, v{X+i}")
round_bf16_4()
e(f"v_max_f32 v{M0}, v{X}, v{X+2}")
e(f"v_max_f32 v{M1}, v{X+1}, v{X+3}")

def row_reduce2(op, a, b):
    for pat in ("quad_perm:[1,0,3,2]", "quad_perm:[2,3,0,1]", "row_half_mirror", "row_mirror"):
        e("s_nop 1")
        e(f"{op}_dpp v{a}, v{a}, v{a} {pat} row_mask:0xf bank_mask:0xf")
        e(f"{op}_dpp v{b}, v{b}, v{b} {pat} row_mask:0xf bank_mask:0xf")
def cross_rows2(op, a, b, ta, tb):
    for sw in ("v_permlane16_swap_b32", "v_permlane32_swap_b32"):
        e(f"v_mov_b32 v{ta}, v{a}")
        e(f"v_mov_b32 v{tb}, v{b}")
        e("s_nop 1")
        e(f"{sw} v{a}, v{ta}")
        e(f"{sw} v{b}, v{tb}")
        e("s_nop 1")
        e(f"{op} v{a}, v{a}, v{ta}")
        e(f"{op} v{b}, v{b}, v{tb}")
row_reduce2("v_max_f32", M0, M1)
cross_rows2("v_max_f32", M0, M1, U0, U1)
for i in range(4):
    e(f"v_sub_f32 v{X+i}, v{X+i}, v{M0 + (i&1)}")
for i in range(4):
    e(f"v_mul_f32 v{X+i}, s{sLOG2E}, v{X+i}")
for i in range(4):
    e(f"v_exp_f32 v{X+i}, v{X+i}")
e("s_nop 0")
e(f"v_add_f32 v{L0}, v{X}, v{X+2}")
e(f"v_add_f32 v{L1}, v{X+1}, v{X+3}")
e(f"v_cvt_pk_bf16_f32 v{PB}, v{X}, v{X+2}")
e(f"v_cvt_pk_bf16_f32 v{PB+1}, v{X+1}, v{X+3}")
e(f"v_lshl_add_u32 v{vA5}, v{vL}, 3, s{sT0}")
e(f"ds_write_b64 v{vA5}, {vr(PB,2)}")
row_reduce2("v_add_f32", L0, L1)
cross_rows2("v_add_f32", L0, L1, U0, U1)
c("wave stats -> LDS ST[w] = (m0,l0,m1,l1); arrival counter")
e(f"v_mov_b32 v{X}, v{M0}")
e(f"v_mov_b32 v{X+1}, v{L0}")
e(f"v_mov_b32 v{X+2}, v{M1}")
e(f"v_mov_b32 v{X+3}, v{L1}")
e(f"s_lshl_b32 s{sT1}, s{sW}, 4")
e(f"v_mov_b32 v{vA5}, s{sT1}")
e(f"v_mov_b32 v{vA6}, {L_CNT}")
e(f"v_mov_b32 v{vA7}, 1")
e("s_mov_b64 exec, 1")
e(f"ds_write_b128 v{vA5}, {vr(X,4)} offset:{L_ST}")
e(f"ds_add_rtn_u32 v{U0}, v{vA6}, v{vA7}")
e("s_mov_b64 exec, -1")
c("P read address: SC_w + (l>>4)*8")
e(f"v_lshrrev_b32 v{vSC}, 4, v{vL}")
e(f"v_lshl_add_u32 v{vSC}, v{vSC}, 3, s{sT0}")
for i in range(16):
    e(f"v_mov_b32 v{A+i}, 0")
e("s_waitcnt lgkmcnt(0)")
e(f"v_readfirstlane_b32 s{sROLE}, v{U0}")
e("s_nop 3")
e(f"s_cmp_lg_u32 s{sROLE}, 15")
e("s_cbranch_scc1 L_notpub")
c("publisher: combine 16 wave stats, store WG stats")
e(f"v_and_b32 v{vA5}, 15, v{vL}")
e(f"v_lshlrev_b32 v{vA5}, 4, v{vA5}")
e(f"ds_read_b128 {vr(X,4)}, v{vA5} offset:{L_ST}")
e("s_waitcnt lgkmcnt(0)")
def combine_stats_row():
    e(f"v_mov_b32 v{M0}, v{X}")
    e(f"v_mov_b32 v{M1}, v{X+2}")
    row_reduce2("v_max_f32", M0, M1)
    e(f"v_sub_f32 v{U0}, v{X}, v{M0}")
    e(f"v_sub_f32 v{U1}, v{X+2}, v{M1}")
    e(f"v_mul_f32 v{U0}, s{sLOG2E}, v{U0}")
    e(f"v_mul_f32 v{U1}, s{sLOG2E}, v{U1}")
    e(f"v_exp_f32 v{U0}, v{U0}")
    e(f"v_exp_f32 v{U1}, v{U1}")
    e("s_nop 0")
    e(f"v_mul_f32 v{L0}, v{U0}, v{X+1}")
    e(f"v_mul_f32 v{L1}, v{U1}, v{X+3}")
    row_reduce2("v_add_f32", L0, L1)
combine_stats_row()
e(f"v_mov_b32 v{X}, v{M0}")
e(f"v_mov_b32 v{X+1}, v{L0}")
e(f"v_mov_b32 v{X+2}, v{M1}")
e(f"v_mov_b32 v{X+3}, v{L1}")
e(f"s_lshl_b32 s{sT1}, s{sGRP}, 7")
e(f"s_lshl_b32 s{sT2}, s{sSPLIT}, 4")
e(f"s_add_u32 s{sT1}, s{sT1}, s{sT2}")
e(f"v_mov_b32 v{vA5}, s{sT1}")
e("s_mov_b64 exec, 1")
e(f"buffer_store_dwordx4 {vr(X,4)}, v{vA5}, {srd(SRD_WS)}, 0 offen offset:{WS_STATS} sc1")
e("s_mov_b64 exec, -1")
e("s_nop 1")
out.append("L_notpub:")

CNTV = B + 58
GST = B + 40
def v_iter(last):
    for j in range(4):
        e(f"ds_read_b64 {vr(PB+2*j,2)}, v{vSC} offset:{j*32}")
    for j in range(4):
        E = S + 8 * j; O = E + 4
        if j == 0:
            e("s_waitcnt vmcnt(6) lgkmcnt(0)")
        else:
            e("s_waitcnt vmcnt(6)")
        for i in range(4):
            e(f"v_perm_b32 v{T+2*i}, v{O+i}, v{E+i}, s{sSELLO}")
            e(f"v_perm_b32 v{T+2*i+1}, v{O+i}, v{E+i}, s{sSELHI}")
        if not last:
            kload(j, SRD_V, vV, f"s{sREF}", 256)
            e(f"s_add_u32 s{sREF}, s{sREF}, {P['TS']}")
        else:
            r = 4 + 2 * (j >> 1); blk = j & 1
            for rr, dst in ((r, E), (r + 1, O)):
                so, io = wo_off(rr, blk * 512)
                e(f"buffer_load_dwordx4 {vr(dst,4)}, v{vWO}, {srd(SRD_WO)}, {so} offen offset:{io}{WOS}")
        for i in range(8):
            e(f"v_dot2c_f32_bf16 v{A+i}, v{PB+2*j}, v{T+i}")
            e(f"v_dot2c_f32_bf16 v{A+8+i}, v{PB+2*j+1}, v{T+i}")
    e(f"v_add_u32 v{vSC}, 128, v{vSC}")

e(f"s_mov_b32 s{sIT}, 0")
out.append("L_vloop:")
v_iter(False)
c("hooks")
e(f"s_cmp_eq_u32 s{sROLE}, 15")
e("s_cbranch_scc1 L_hook_pub")
e(f"s_cmp_eq_u32 s{sROLE}, 0")
e("s_cbranch_scc1 L_hook_poll")
out.append("L_hook_done:")
e(f"s_add_u32 s{sIT}, s{sIT}, 1")
e(f"s_cmp_lt_u32 s{sIT}, 3")
e("s_cbranch_scc1 L_vloop")
v_iter(True)
stamp(3)

c("reduce acc over the 4 rows")
e("s_nop 3")
for i in range(8):
    e(f"v_permlane32_swap_b32 v{A+i}, v{A+8+i}")
e("s_nop 1")
for i in range(8):
    e(f"v_add_f32 v{A+i}, v{A+i}, v{A+8+i}")
e("s_nop 1")
for i in range(4):
    e(f"v_permlane16_swap_b32 v{A+i}, v{A+4+i}")
e("s_nop 1")
for i in range(4):
    e(f"v_add_f32 v{A+i}, v{A+i}, v{A+4+i}")
c("o index = (l>>5)*128 + (l&15)*8 + ((l>>4)&1)*4")
e(f"v_lshrrev_b32 v{vA5}, 5, v{vL}")
e(f"v_lshlrev_b32 v{vA5}, 9, v{vA5}")
e(f"v_and_b32 v{vA6}, 15, v{vL}")
e(f"v_lshl_add_u32 v{vA5}, v{vA6}, 5, v{vA5}")
e(f"v_and_b32 v{vA6}, 16, v{vL}")
e(f"v_add_u32 v{vA5}, v{vA6}, v{vA5}")
e(f"s_mul_i32 s{sT0}, s{sW}, {OP_STRIDE}")
e(f"v_add_u32 v{vA5}, s{sT0}, v{vA5}")
e(f"ds_write_b128 v{vA5}, {vr(A,4)} offset:{L_OP}")
e("s_waitcnt vmcnt(0)")
c("poller: global stats -> factor table")
e(f"s_cmp_lg_u32 s{sROLE}, 0")
e("s_cbranch_scc1 L_nofac")
combine_stats_row()
e(f"v_mul_f32 v{L0}, 0.5, v{L0}")
e(f"v_mul_f32 v{L1}, 0.5, v{L1}")
e(f"v_rcp_f32 v{L0}, v{L0}")
e(f"v_rcp_f32 v{L1}, v{L1}")
c("lane l<32: h = l>>4, wv = l&15 : f = exp2((m_wv,h - M_h)*log2e) * invL_h")
e(f"v_and_b32 v{vA5}, 15, v{vL}")
e(f"v_lshlrev_b32 v{vA5}, 4, v{vA5}")
e(f"v_and_b32 v{vA6}, 16, v{vL}")
e(f"v_lshrrev_b32 v{vA7}, 1, v{vA6}")
e(f"v_add_u32 v{vA5}, v{vA7}, v{vA5}")
e(f"ds_read_b32 v{U0}, v{vA5} offset:{L_ST}")
e(f"v_cmp_ne_u32 vcc, 0, v{vA6}")
e("s_nop 1")
e(f"v_cndmask_b32 v{M0}, v{M0}, v{M1}, vcc")
e(f"v_cndmask_b32 v{L0}, v{L0}, v{L1}, vcc")
e("s_waitcnt lgkmcnt(0)")
e(f"v_sub_f32 v{U0}, v{U0}, v{M0}")
e(f"v_mul_f32 v{U0}, s{sLOG2E}, v{U0}")
e(f"v_exp_f32 v{U0}, v{U0}")
e(f"v_and_b32 v{vA5}, 31, v{vL}")
e(f"v_lshlrev_b32 v{vA5}, 2, v{vA5}")
e(f"v_mul_f32 v{U0}, v{U0}, v{L0}")
e(f"ds_write_b32 v{vA5}, v{U0} offset:{L_FT}")
out.append("L_nofac:")
c("permute wo tail rows (4,5),(6,7) in the stream slots")
for j in range(4):
    E = S + 8 * j; O = E + 4
    for i in range(4):
        perm_pair(E + i, O + i, T + i)
c("addresses for the o combine")
e(f"v_lshrrev_b32 v{vA5}, 4, v{vL}")
e(f"v_mul_u32_u24 v{vA6}, {4*OP_STRIDE}, v{vA5}")
e(f"v_and_b32 v{vA7}, 15, v{vL}")
e(f"v_lshl_add_u32 v{vA6}, v{vA7}, 2, v{vA6}")
e(f"s_lshl_b32 s{sT0}, s{sW}, 6")
e(f"v_add_u32 v{vA6}, s{sT0}, v{vA6}")
e(f"s_lshr_b32 s{sT1}, s{sW}, 3")
e(f"s_lshl_b32 s{sT1}, s{sT1}, 6")
e(f"v_lshl_add_u32 v{vA5}, v{vA5}, 4, s{sT1}")
e("s_waitcnt lgkmcnt(0)")
e("s_barrier")
for i in range(4):
    e(f"ds_read_b32 v{T+i}, v{vA6} offset:{L_OP + i*OP_STRIDE}")
e(f"ds_read_b128 {vr(X,4)}, v{vA5} offset:{L_FT}")
Y = A
def yreg(i): return A + i if i < 16 else U0 + (i - 16)
for i in range(18):
    e(f"v_mov_b32 v{yreg(i)}, 0")
e("s_waitcnt lgkmcnt(0)")
e(f"v_mul_f32 v{T}, v{T}, v{X}")
e(f"v_fmac_f32 v{T}, v{T+1}, v{X+1}")
e(f"v_fmac_f32 v{T}, v{T+2}, v{X+2}")
e(f"v_fmac_f32 v{T}, v{T+3}, v{X+3}")
for sw in ("v_permlane16_swap_b32", "v_permlane32_swap_b32"):
    e(f"v_mov_b32 v{T+1}, v{T}")
    e("s_nop 1")
    e(f"{sw} v{T}, v{T+1}")
    e("s_nop 1")
    e(f"v_add_f32 v{T}, v{T}, v{T+1}")
e("s_nop 1")
e(f"v_mov_b32_dpp v{T+1}, v{T} quad_perm:[1,0,3,2] row_mask:0xf bank_mask:0xf")
e(f"v_cvt_pk_bf16_f32 v{T}, v{T}, v{T+1}")
e("s_nop 1")
OPJ = T + 2
for j in range(4):
    e(f"v_mov_b32_dpp v{OPJ+j}, v{T} row_newbcast:{2*j} row_mask:0x3 bank_mask:0xf")
    e(f"v_mov_b32_dpp v{OPJ+j}, v{T} row_newbcast:{8+2*j} row_mask:0xc bank_mask:0xf")
c("GEMV")
def wp(j, blk, i, hi):
    if j < 2:
        return wo4_reg(2*j + hi, blk) + i
    jj = (j - 2) * 2 + blk
    return S + 8 * jj + 4 * hi + i
for j in range(4):
    for blk in range(2):
        for i in range(4):
            for hi in range(2):
                e(f"v_dot2c_f32_bf16 v{yreg(blk*8 + 2*i + hi)}, v{OPJ+j}, v{wp(j,blk,i,hi)}")
    for hi in range(2):
        e(f"v_dot2c_f32_bf16 v{yreg(16+hi)}, v{OPJ+j}, v{wo1_reg(2*j+hi)}")
c("y address: YP + w*2304 + (8*c32 + 4*hf)*4 ; tail: 2048 + (2*c32+hf)*4")
e(f"s_mul_i32 s{sT0}, s{sW}, 2304")
e(f"v_and_b32 v{vA5}, 31, v{vL}")
e(f"v_lshrrev_b32 v{vA6}, 5, v{vL}")
e(f"v_lshl_add_u32 v{vA7}, v{vA5}, 1, v{vA6}")
e(f"v_lshl_add_u32 v{vA5}, v{vA7}, 4, s{sT0}")
e(f"v_lshl_add_u32 v{vA7}, v{vA7}, 2, s{sT0}")
for blk in range(2):
    for i in range(4):
        e(f"v_permlane32_swap_b32 v{yreg(blk*8+i)}, v{yreg(blk*8+4+i)}")
e(f"v_permlane32_swap_b32 v{yreg(16)}, v{yreg(17)}")
e("s_nop 1")
for blk in range(2):
    for i in range(4):
        e(f"v_add_f32 v{yreg(blk*8+i)}, v{yreg(blk*8+i)}, v{yreg(blk*8+4+i)}")
e(f"v_add_f32 v{yreg(16)}, v{yreg(16)}, v{yreg(17)}")
e(f"ds_write_b128 v{vA5}, {vr(yreg(0),4)} offset:{L_YP}")
e(f"ds_write_b128 v{vA5}, {vr(yreg(8),4)} offset:{L_YP+1024}")
e(f"ds_write_b32 v{vA7}, v{yreg(16)} offset:{L_YP+2048}")
c("y sum addresses: YP + (4*(l>>4))*2304 + (w*16 + (l&15))*16")
e(f"v_lshrrev_b32 v{vA5}, 4, v{vL}")
e(f"v_mul_u32_u24 v{vA5}, {4*2304}, v{vA5}")
e(f"v_and_b32 v{vA6}, 15, v{vL}")
e(f"s_lshl_b32 s{sT0}, s{sW}, 4")
e(f"v_add_u32 v{vA6}, s{sT0}, v{vA6}")
e(f"v_lshl_add_u32 v{vA5}, v{vA6}, 4, v{vA5}")
c("global y address: WS_Y + pr*YPR + (q4>>3)*16384 + pidx*128 + (q4&7)*16")
e(f"s_mul_i32 s{sT0}, s{sPR}, {WS_YPR}")
e(f"s_lshl_b32 s{sT1}, s{sPIDX}, 7")
e(f"s_add_u32 s{sT0}, s{sT0}, s{sT1}")
e(f"s_add_u32 s{sT0}, s{sT0}, {WS_Y}")
e(f"v_lshrrev_b32 v{vA7}, 3, v{vA6}")
e(f"v_lshlrev_b32 v{vA7}, 14, v{vA7}")
e(f"v_and_b32 v{vA6}, 7, v{vA6}")
e(f"v_lshl_add_u32 v{vA7}, v{vA6}, 4, v{vA7}")
e(f"v_add_u32 v{vA7}, s{sT0}, v{vA7}")
e("s_waitcnt lgkmcnt(0)")
e("s_barrier")
e(f"s_cmp_ge_u32 s{sW}, 9")
e("s_cbranch_scc1 L_ydone")
for i in range(4):
    e(f"ds_read_b128 {vr(A+4*i,4)}, v{vA5} offset:{L_YP + i*2304}")
e("s_waitcnt lgkmcnt(0)")
for k in range(4):
    e(f"v_add_f32 v{A+k}, v{A+k}, v{A+4+k}")
    e(f"v_add_f32 v{A+8+k}, v{A+8+k}, v{A+12+k}")
for k in range(4):
    e(f"v_add_f32 v{A+k}, v{A+k}, v{A+8+k}")
for sw in ("v_permlane16_swap_b32", "v_permlane32_swap_b32"):
    for k in range(4):
        e(f"v_mov_b32 v{A+4+k}, v{A+k}")
    e("s_nop 1")
    for k in range(4):
        e(f"{sw} v{A+k}, v{A+4+k}")
    e("s_nop 1")
    for k in range(4):
        e(f"v_add_f32 v{A+k}, v{A+k}, v{A+4+k}")
c("never publish the sentinel bit pattern")
e(f"v_mov_b32 v{A+4}, 0x7fc00000")
for k in range(4):
    e(f"v_cmp_eq_u32 vcc, -1, v{A+k}")
    e("s_nop 1")
    e(f"v_cndmask_b32 v{A+k}, v{A+k}, v{A+4}, vcc")
e("s_mov_b64 exec, 0xffff")
e(f"buffer_store_dwordx4 {vr(A,4)}, v{vA7}, {srd(SRD_WS)}, 0 offen sc1")
e("s_mov_b64 exec, -1")
e("s_nop 1")
out.append("L_ydone:")
stamp(4)
e(f"s_cmp_ge_u32 s{sPIDX}, 18")
e("s_cbranch_scc1 L_end")

e(f"s_mul_i32 s{sT0}, s{sPR}, {WS_YPR}")
e(f"s_lshl_b32 s{sT1}, s{sPIDX}, 14")
e(f"s_add_u32 s{sT0}, s{sT0}, s{sT1}")
e(f"s_add_u32 s{sT0}, s{sT0}, {WS_Y}")
e(f"v_lshlrev_b32 v{vA6}, 4, v0")
e(f"v_add_u32 v{vA6}, s{sT0}, v{vA6}")
e(f"s_mov_b32 s{sSPIN}, 0")
out.append("L_cpoll:")
e(f"buffer_load_dwordx4 {vr(A,4)}, v{vA6}, {srd(SRD_WS)}, 0 offen sc1")
e(f"s_add_u32 s{sSPIN}, s{sSPIN}, 1")
e("s_waitcnt vmcnt(0)")
e(f"v_max_u32 v{A+4}, v{A}, v{A+1}")
e(f"v_max_u32 v{A+5}, v{A+2}, v{A+3}")
e(f"v_max_u32 v{A+4}, v{A+4}, v{A+5}")
e(f"v_cmp_eq_u32 vcc, -1, v{A+4}")
e("s_nop 3")
e("s_cmp_eq_u64 vcc, 0")
e("s_cbranch_scc1 L_cgot")
e(f"s_cmp_lt_u32 s{sSPIN}, {P['SPIN']}")
e("s_cbranch_scc1 L_cpoll")
out.append("L_cgot:")
for k in range(4):
    e(f"v_add_f32_dpp v{A+k}, v{A+k}, v{A+k} row_ror:8 row_mask:0xf bank_mask:0xf")
for sw in ("v_permlane16_swap_b32", "v_permlane32_swap_b32"):
    for k in range(4):
        e(f"v_mov_b32 v{A+4+k}, v{A+k}")
    e("s_nop 1")
    for k in range(4):
        e(f"{sw} v{A+k}, v{A+4+k}")
    e("s_nop 1")
    for k in range(4):
        e(f"v_add_f32 v{A+k}, v{A+k}, v{A+4+k}")
e(f"s_lshl_b32 s{sT0}, s{sW}, 7")
e(f"v_lshl_add_u32 v{vA5}, v{vL}, 4, s{sT0}")
e("s_mov_b64 exec, 0xff")
e(f"ds_write_b128 v{vA5}, {vr(A,4)} offset:{L_FR}")
e("s_mov_b64 exec, -1")
e("s_waitcnt lgkmcnt(0)")
e("s_barrier")
e(f"s_cmp_lg_u32 s{sW}, 0")
e("s_cbranch_scc1 L_end")
e(f"v_and_b32 v{vA5}, 31, v{vL}")
e(f"v_lshlrev_b32 v{vA6}, 2, v{vA5}")
for w in range(16):
    e(f"ds_read_b32 v{A+w}, v{vA6} offset:{L_FR + w*128}")
e(f"s_mul_i32 s{sT0}, s{sPR}, 1152")
e(f"s_lshl_b32 s{sT1}, s{sPIDX}, 6")
e(f"s_add_u32 s{sT0}, s{sT0}, s{sT1}")
e(f"v_lshl_add_u32 v{vA5}, v{vA5}, 1, s{sT0}")
e("s_waitcnt lgkmcnt(0)")
for st in (8, 4, 2, 1):
    for i in range(st):
        e(f"v_add_f32 v{A+i}, v{A+i}, v{A+i+st}")
e(f"v_cvt_pk_bf16_f32 v{A}, v{A}, v{A}")
e("s_mov_b32 exec_hi, 0")
e(f"buffer_store_short v{A}, v{vA5}, {srd(SRD_OUT)}, 0 offen")
e("s_mov_b64 exec, -1")
stamp(5)
out.append("L_end:")
e("s_endpgm")

out.append("L_hook_pub:")
e(f"s_cmp_lg_u32 s{sIT}, 0")
e("s_cbranch_scc1 L_hook_done")
e(f"s_lshl_b32 s{sT1}, s{sPR}, 7")
e(f"v_mov_b32 v{vA5}, s{sT1}")
e(f"v_mov_b32 v{vA6}, 1")
e("s_mov_b64 exec, 1")
e(f"buffer_atomic_add v{vA6}, v{vA5}, {srd(SRD_DBG)}, 0 offen sc1")
e("s_mov_b64 exec, -1")
e("s_branch L_hook_done")

out.append("L_hook_poll:")
e(f"s_cmp_eq_u32 s{sIT}, 0")
e("s_cbranch_scc1 L_hook_done")
e(f"s_lshl_b32 s{sT1}, s{sPR}, 7")
e(f"v_mov_b32 v{vA5}, s{sT1}")
e(f"s_cmp_eq_u32 s{sIT}, 2")
e("s_cbranch_scc1 L_poll_check")
e(f"buffer_load_dword v{CNTV}, v{vA5}, {srd(SRD_DBG)}, 0 offen sc1")
e("s_branch L_hook_done")
out.append("L_poll_check:")
e(f"s_mov_b32 s{sSPIN}, 0")
out.append("L_poll_loop:")
e(f"v_readfirstlane_b32 s{sT2}, v{CNTV}")
e("s_nop 3")
e(f"s_cmp_ge_u32 s{sT2}, 128")
e("s_cbranch_scc1 L_poll_ok")
e(f"s_add_u32 s{sSPIN}, s{sSPIN}, 1")
e(f"s_cmp_ge_u32 s{sSPIN}, {P['SPIN']}")
e("s_cbranch_scc1 L_poll_ok")
e("s_sleep 2")
e(f"buffer_load_dword v{CNTV}, v{vA5}, {srd(SRD_DBG)}, 0 offen sc1")
e("s_waitcnt vmcnt(0)")
e("s_branch L_poll_loop")
out.append("L_poll_ok:")
e(f"s_lshl_b32 s{sT1}, s{sGRP}, 7")
e(f"v_and_b32 v{vA5}, 7, v{vL}")
e(f"v_lshl_add_u32 v{vA5}, v{vA5}, 4, s{sT1}")
e(f"buffer_load_dwordx4 {vr(X,4)}, v{vA5}, {srd(SRD_WS)}, 0 offen offset:{WS_STATS} sc1")
e("s_branch L_hook_done")

out.append('.section .rodata,"a"')
out.append(".p2align 6")
out.append(f".amdhsa_kernel {NAME}_kernel")
out.append("  .amdhsa_next_free_vgpr 128")
out.append("  .amdhsa_next_free_sgpr 102")
out.append("  .amdhsa_accum_offset 128")
out.append("  .amdhsa_group_segment_fixed_size 0")
out.append("  .amdhsa_kernarg_size 104")
out.append("  .amdhsa_user_sgpr_count 2")
out.append("  .amdhsa_user_sgpr_kernarg_segment_ptr 1")
out.append("  .amdhsa_system_sgpr_workgroup_id_x 1")
out.append(".end_amdhsa_kernel")

open(sys.argv[1], "w").write("\n".join(out) + "\n")
```
